```python
import torch

def _softmax(x, axis=-1):
    return torch.softmax(x, dim=axis)
def _gelu(x):
    return torch.nn.functional.gelu(x, approximate="tanh")
def _silu(x):
    return torch.nn.functional.silu(x)
def _sigmoid(x):
    return torch.sigmoid(x)
def _layernorm(x, axis=-1, eps=1e-5):
    m = x.mean(dim=axis, keepdim=True)
    v = x.var(dim=axis, keepdim=True, unbiased=False)
    return (x - m) / torch.sqrt(v + eps)
def _scatter_add(tgt, idx, src, axis=0):
    return tgt.clone().index_add_(axis, idx, src)
def _segment_sum(src, seg, n):
    out = torch.zeros((n,) + src.shape[1:], dtype=src.dtype)
    return out.index_add_(0, seg, src)
def _pad(x, pw):
    flat = tuple(v for pair in reversed(pw) for v in pair)
    return torch.nn.functional.pad(x, flat)

kernel_name = 'sequential_preLN__linear_kernel_hedgehog__geglu_ffn__prompt'

def setup_inputs():

    _w = (lambda a: (lambda t: t.to(torch.bfloat16) if t.is_floating_point() else t)(torch.as_tensor(a)))
    def _A_setup():
        B, S, D, H = 1, 2048, 576, 32
        Dh = D // H
        return {
            "x": _w((lambda *s: torch.randn(*s, dtype=torch.bfloat16) * 0.05)(B, S, D)),
            "wqkv": _w((lambda *s: torch.randn(*s, dtype=torch.bfloat16) * 0.2)(D, 3 * D)),
            "w_phi": _w((lambda *s: torch.randn(*s, dtype=torch.bfloat16) * 0.2)(H, Dh, Dh) * (Dh ** -0.5)),
            "wo": _w((lambda *s: torch.randn(*s, dtype=torch.bfloat16) * 0.05)(D, D)),
        }
    _A_in = _A_setup()

    def _B_setup():
        B, S, D, F = 1, 2048, 576, 4608
        return {
            "x": _w((lambda *s: torch.randn(*s, dtype=torch.bfloat16) * 0.05)(B, S, D)),
            "w_gate": _w((lambda *s: torch.randn(*s, dtype=torch.bfloat16) * 0.05)(D, F)),
            "w_up": _w((lambda *s: torch.randn(*s, dtype=torch.bfloat16) * 0.05)(D, F)),
            "w_down": _w((lambda *s: torch.randn(*s, dtype=torch.bfloat16) * 0.05)(F, D)),
        }
    _B_in = _B_setup()

    return {
        "A_x": _A_in["x"],
        "A_wqkv": _A_in["wqkv"],
        "A_w_phi": _A_in["w_phi"],
        "A_wo": _A_in["wo"],
        "B_x": _B_in["x"],
        "B_w_gate": _B_in["w_gate"],
        "B_w_up": _B_in["w_up"],
        "B_w_down": _B_in["w_down"],
    }

def reference(A_x, A_wqkv, A_w_phi, A_wo, B_x, B_w_gate, B_w_up, B_w_down):
    def _A_ref(x, wqkv, w_phi, wo):
        B, S, D = x.shape
        H = 32; Dh = D // H
        qkv = (lambda x, *d: x.permute(*d))((x @ wqkv).reshape(B, S, 3, H, Dh), 2, 0, 3, 1, 4)
        q, k, v = qkv[0], qkv[1], qkv[2]
        pq = torch.einsum("bhsd,hdf->bhsf", q, w_phi)
        pk = torch.einsum("bhsd,hdf->bhsf", k, w_phi)
        phi_q = torch.concatenate([_softmax(pq, axis=-1), _softmax(-pq, axis=-1)], axis=-1)
        phi_k = torch.concatenate([_softmax(pk, axis=-1), _softmax(-pk, axis=-1)], axis=-1)
        kv = torch.einsum("bhsf,bhsd->bhfd", phi_k, v)
        z  = torch.einsum("bhsf->bhf", phi_k)
        num = torch.einsum("bhqf,bhfd->bhqd", phi_q, kv)
        den = torch.einsum("bhqf,bhf->bhq", phi_q, z)[..., None] + 1e-6
        o = num / den
        return (lambda x, *d: x.permute(*d))(o, 0, 2, 1, 3).reshape(B, S, D) @ wo

    def _B_ref(x, w_gate, w_up, w_down):
        return (_gelu(x @ w_gate) * (x @ w_up)) @ w_down

    x = A_x
    h = x + _A_ref(_layernorm(x, axis=-1), A_wqkv, A_w_phi, A_wo)
    h2 = h + _B_ref(_layernorm(h, axis=-1), B_w_gate, B_w_up, B_w_down)
    return h2
```

```python
class Asm:
    def __init__(self):
        self.lines = []
    def __call__(self, s):
        self.lines.append("    " + s)
    def raw(self, s):
        self.lines.append(s)
    def label(self, n):
        self.lines.append(n + ":")
    def comment(self, s):
        self.lines.append("    ; " + s)
    def text(self):
        return "\n".join(self.lines) + "\n"

def vr(b, n=1):
    return f"v{b}" if n == 1 else f"v[{b}:{b+n-1}]"
def ar(b, n=1):
    return f"a{b}" if n == 1 else f"a[{b}:{b+n-1}]"
def sr(b, n=1):
    return f"s{b}" if n == 1 else f"s[{b}:{b+n-1}]"

class VM:
    def __init__(self):
        self.ops = []
    def issue(self, tag):
        self.ops.append(tag)
    def n_after(self, pred):
        last = None
        for i, t in enumerate(self.ops):
            if pred(t):
                last = i
        if last is None:
            return None
        return len(self.ops) - 1 - last

def kernel_header(name):
    return f""".globl {name}
.p2align 8
.type {name},@function
{name}:
"""

def kernel_desc(name, vgpr, sgpr, accum):
    return f""".section .rodata,"a"
.p2align 6
.amdhsa_kernel {name}
  .amdhsa_next_free_vgpr {vgpr}
  .amdhsa_next_free_sgpr {sgpr}
  .amdhsa_accum_offset {accum}
  .amdhsa_group_segment_fixed_size 0
  .amdhsa_kernarg_size 88
  .amdhsa_user_sgpr_count 2
  .amdhsa_user_sgpr_kernarg_segment_ptr 1
  .amdhsa_system_sgpr_workgroup_id_x 1
  .amdhsa_float_denorm_mode_32 3
  .amdhsa_float_denorm_mode_16_64 3
.end_amdhsa_kernel
.text
"""
```

```python
from asm import *
from layout import *

def srd_ws(A, base=8, ptr=4):
    A(f"s_mov_b32 s{base}, s{ptr}")
    A(f"s_mov_b32 s{base+1}, s{ptr+1}")
    A(f"s_mov_b32 s{base+2}, 0x{WS_BYTES:x}")
    A(f"s_mov_b32 s{base+3}, 0x00020000")

class Sched:
    def __init__(self, A, budget=24):
        self.A = A
        self.budget = budget
        self.vm = VM()
        self.vm_done_upto = 0
        self.ninstr = 0
    def emit(self, s):
        self.A(s); self.ninstr += 1
    def vm_issue(self, s, tag):
        self.emit(s); self.vm.issue(tag)
    def vm_outstanding(self):
        return len(self.vm.ops) - self.vm_done_upto
    def vm_wait(self, pred):
        n = self.vm.n_after(pred)
        if n is None: return
        idx = len(self.vm.ops) - n
        if idx <= self.vm_done_upto: return
        assert n <= 63, n
        self.emit(f"s_waitcnt vmcnt({n})")
        self.vm_done_upto = idx

def gen_gemm1(name="g1_kernel", budget=24, G=3, st_flags="", ld_flags="", stamp=False, vmcost=16, init_chunks=2, fmacost=4, vm_period=2, no_epi=False, no_lds=False, no_mfma=False, b_vgpr=False):
    A = Asm()
    A.raw(kernel_header(name))
    NT = 9
    V_LIN, V_ST, V_TMP = 1, 2, 3
    C0 = [4, 7]; C1 = [5, 8]; VV = [6, 9]
    T = list(range(10, 18))
    AF = [20, 24, 28, 32]
    VL = [36, 37, 38, 39]
    ACC0 = 64; NBLK = 8
    def tok(tt, ks):
        i = tt * 36 + ks
        return ar(4 * i, 4) if i < 64 else vr(224 + 4 * (i - 64), 4)
    A("s_cmp_ge_u32 s2, 256")
    A(f"s_cbranch_scc1 L_{name}_end")
    A("s_load_dwordx2 s[4:5], s[0:1], 80")
    if stamp:
        A("s_memtime s[40:41]")
        A("s_memrealtime s[48:49]")
    A("v_lshrrev_b32 v3, 6, v0")
    A("v_and_b32 v0, 63, v0")
    A("v_readfirstlane_b32 s12, v3")
    A("v_lshlrev_b32 v1, 4, v0")
    A("s_and_b32 s14, s2, 7")
    A("s_lshl_b32 s14, s14, 2")
    A("s_bfe_u32 s15, s2, 0x20003")
    A("s_add_u32 s14, s14, s15")
    A("s_lshr_b32 s13, s2, 5")
    A("s_lshl_b32 s15, s13, 3")
    A("s_lshl_b32 s16, s12, 1")
    A("s_add_u32 s15, s15, s16")
    A("s_mul_i32 s16, s15, 36864")
    A(f"s_add_u32 s16, s16, 0x{WS_HC:x}")
    A(f"s_mul_i32 s17, s14, {9*36864}")
    A(f"s_add_u32 s17, s17, 0x{WS_WGU:x}")
    A("s_lshl_b32 s22, s12, 10")
    A("s_add_u32 s21, s17, s22")
    A("s_mul_i32 s24, s12, 9216")
    A("s_add_u32 s23, s17, s24")
    A(f"s_mul_i32 s20, s15, {2*144*1024}")
    A(f"s_mul_i32 s25, s14, {9*512}")
    A("s_add_u32 s20, s20, s25")
    A(f"s_add_u32 s20, s20, 0x{WS_ACT:x}")
    A("v_bfe_u32 v3, v0, 4, 1")
    A("s_mov_b32 s26, 147456")
    A("v_mul_lo_u32 v2, v3, s26")
    A("v_and_b32 v3, 15, v0")
    A("v_lshlrev_b32 v3, 4, v3")
    A("v_add_u32 v2, v2, v3")
    A("v_lshrrev_b32 v3, 5, v0")
    A("v_lshlrev_b32 v3, 8, v3")
    A("v_add_u32 v2, v2, v3")
    for s in range(4):
        A(f"v_add_u32 v{VL[s]}, {s*36864}, v1")
    A("v_and_b32 v3, 31, v0")
    A("v_lshlrev_b32 v3, 5, v3")
    A("s_lshl_b32 s26, s15, 10")
    A(f"s_add_u32 s26, s26, 0x{WS_SSQ:x}")
    A("s_waitcnt lgkmcnt(0)")
    srd_ws(A)
    S = Sched(A, budget)
    SQ = ACC0 + 16 * 6
    for tt in range(2):
        S.vm_issue(f"buffer_load_dwordx4 {vr(SQ+16*tt,4)}, v3, s[8:11], s26 offen offset:{tt*1024} {ld_flags}", ("ssq",))
        S.vm_issue(f"buffer_load_dwordx4 {vr(SQ+16*tt+4,4)}, v3, s[8:11], s26 offen offset:{tt*1024+16} {ld_flags}", ("ssq",))

    nchunk = 9
    def chunk_loads(c):
        items = []
        for nt in range(G):
            off = nt * 36864 + 4096 * c
            items.append(([f"s_add_u32 m0, s22, {off}", f"s_add_u32 s27, s21, {off}"],
                          f"buffer_load_dwordx4 v1, s[8:11], s27 offen lds", ("chunk", c)))
        for tt in range(2):
            pre = [f"s_add_u32 s28, s16, {tt*36864 + 4096*c}"]
            for q in range(4):
                items.append((pre, f"buffer_load_dwordx4 {tok(tt, 4*c+q)}, v1, s[8:11], s28 offen offset:{q*1024} {ld_flags}", ("chunk", c)))
                pre = []
        return items
    def tile_loads(i):
        items = []
        slot = i % 4
        for j in range(9):
            pre = []
            if j % 4 == 0:
                pre = [f"s_add_u32 m0, s24, {slot*36864 + j*1024}", f"s_add_u32 s27, s23, {i*36864 + j*1024}"]
            items.append((pre, f"buffer_load_dwordx4 v1, s[8:11], s27 offen offset:{(j%4)*1024} lds", ("tile", i)))
        return items

    loadq = []
    for c in range(nchunk): loadq += chunk_loads(c)
    for i in range(G, 4): loadq += tile_loads(i)
    def try_load():
        if not loadq: return 0
        if S.vm_outstanding() >= 62: return 0
        pre, ins, tag = loadq.pop(0)
        for p in pre: S.emit(p)
        S.vm_issue(ins, tag)
        return 4 * len(pre) + vmcost
    for _ in range(init_chunks * (G + 8)):
        try_load()

    frags = [(nt, ks) for ks in range(36) for nt in range(G)] + [(t, ks) for t in range(G, NT) for ks in range(36)]
    nfr = len(frags)
    seg_start = {}
    for c in range(nchunk): seg_start[4 * G * c] = ("chunk", c)
    for t in range(G, NT): seg_start[36 * G + 36 * (t - G)] = ("tile", t)
    free_blocks = list(range(6)) + [6, 7]
    blk = {}
    def alloc(nt):
        for tt in range(2):
            blk[(nt, tt)] = free_blocks.pop(0)
    for nt in range(G): alloc(nt)
    epi = []
    epi_ready_at = []
    def make_epi(nt, tt):
        b = ACC0 + 16 * blk[(nt, tt)]
        ops = []
        for g in range(2):
            Tg = T[4 * g: 4 * g + 4]
            G_ = [b + 4 * g + r for r in range(4)]
            U_ = [b + 8 + 4 * g + r for r in range(4)]
            for r in range(4): ops.append(("v", f"v_mul_f32 v{Tg[r]}, v{G_[r]}, v{G_[r]}"))
            for r in range(4): ops.append(("f", f"v_fma_f32 v{Tg[r]}, v{Tg[r]}, v{C1[tt]}, v{C0[tt]}"))
            for r in range(4): ops.append(("v", f"v_mul_f32 v{Tg[r]}, v{G_[r]}, v{Tg[r]}"))
            for r in range(4): ops.append(("t", f"v_exp_f32 v{Tg[r]}, v{Tg[r]}"))
            for r in range(4): ops.append(("v", f"v_mul_f32 v{U_[r]}, v{G_[r]}, v{U_[r]}"))
            for r in range(4): ops.append(("f", f"v_fma_f32 v{Tg[r]}, v{Tg[r]}, v{VV[tt]}, v{VV[tt]}"))
            for r in range(4): ops.append(("t", f"v_rcp_f32 v{Tg[r]}, v{Tg[r]}"))
            ops.append(("n", "s_nop 0"))
            for r in range(4): ops.append(("v", f"v_mul_f32 v{U_[r]}, v{U_[r]}, v{Tg[r]}"))
            ops.append(("v", f"v_cvt_pk_bf16_f32 v{b+2*g}, v{U_[0]}, v{U_[1]}"))
            ops.append(("v", f"v_cvt_pk_bf16_f32 v{b+2*g+1}, v{U_[2]}, v{U_[3]}"))
        if no_epi: ops = []
        ops.append(("s", f"s_add_u32 s29, s20, {tt*2*144*1024 + nt*512}"))
        ops.append(("st", f"buffer_store_dwordx4 {vr(b,4)}, v2, s[8:11], s29 offen {st_flags}", (nt, tt)))
        return ops
    def stats_ops():
        ops = []
        for tt in range(2):
            q = SQ + 16 * tt
            ops += [("v", f"v_add_f32 v{q}, v{q}, v{q+1}"), ("v", f"v_add_f32 v{q+2}, v{q+2}, v{q+3}"),
                    ("v", f"v_add_f32 v{q+4}, v{q+4}, v{q+5}"), ("v", f"v_add_f32 v{q+6}, v{q+6}, v{q+7}"),
                    ("v", f"v_add_f32 v{q}, v{q}, v{q+2}"), ("v", f"v_add_f32 v{q+4}, v{q+4}, v{q+6}"),
                    ("v", f"v_add_f32 v{q}, v{q}, v{q+4}"),
                    ("v", f"v_mov_b32 v{q+1}, 0x{f2u(EPS):x}"),
                    ("v", f"v_fmac_f32 v{q+1}, 0x{f2u(1.0/576):x}, v{q}"),
                    ("v", f"v_mov_b32 v{VV[tt]}, v{q+1}"),
                    ("t", f"v_rsq_f32 v{q+2}, v{q+1}"),
                    ("n", "s_nop 0"),
                    ("v", f"v_mul_f32 v{C0[tt]}, 0x{f2u(K0):x}, v{q+2}"),
                    ("v", f"v_mul_f32 v{q+3}, v{q+2}, v{q+2}"),
                    ("v", f"v_mul_f32 v{q+3}, v{q+3}, v{q+2}"),
                    ("v", f"v_mul_f32 v{C1[tt]}, 0x{f2u(K1):x}, v{q+3}")]
        return ops
    cost = {"v": 4, "f": fmacost, "t": 8, "n": 4, "s": 4, "st": vmcost}

    nread = 0
    lg = []
    opened = -1
    def seg_of(i):
        best = None
        for k in sorted(seg_start):
            if k <= i: best = k
        return best
    nstamp = [0]
    def do_stamp():
        if not stamp: return
        i = nstamp[0]; nstamp[0] += 1
        S.emit(f"s_memtime s[{50+2*i}:{51+2*i}]")
    def open_segment(i0):
        desc = seg_start[i0]
        if desc[0] == "tile":
            if lg_unwaited():
                S.emit("s_waitcnt lgkmcnt(0)"); mark_lg(0)
        while any(it[2] == desc for it in loadq):
            pre, ins, tag = loadq.pop(0)
            for p in pre: S.emit(p)
            S.vm_issue(ins, tag)
        S.vm_wait(lambda t: t == desc)
        S.emit("s_barrier")
        if desc[0] == "tile" or desc[1] in (0, 4): do_stamp()
        if desc[0] == "tile":
            t = desc[1]
            if t == G:
                for i in range(4, min(4 + G, NT)): loadq.extend(tile_loads(i))
            elif t + 3 < NT and t + 3 >= 4 + G:
                loadq.extend(tile_loads(t + 3))
    lgstate = {"issued": 0, "done": 0}
    def lg_unwaited(): return lgstate["issued"] > lgstate["done"]
    def mark_lg(n): lgstate["done"] = max(lgstate["done"], lgstate["issued"] - n)
    def issue_read(cur):
        nonlocal nread, opened
        if nread >= nfr: return 0
        if nread > cur + 3: return 0
        if nread in seg_start and nread > opened: return 0
        nt, ks = frags[nread]
        if no_lds and nread >= 4:
            S.emit("s_nop 0")
        else:
            S.emit(f"ds_read_b128 {vr(AF[nread%4],4)}, v{VL[nt%4]} offset:{ks*1024}")
        lgstate["issued"] += 1
        nread += 1
        return 4
    open_segment(0); opened = 0
    epi.extend(stats_ops())
    for _ in range(3): issue_read(0)
    first_use = set()
    gapno = [0]; last_vm = [-10]
    block_done_at = {}
    for fi, (nt, ks) in enumerate(frags):
        need = lgstate["issued"] - (fi + 1)
        if lgstate["done"] < fi + 1:
            S.emit(f"s_waitcnt lgkmcnt({need})"); mark_lg(need)
        if fi == 36 * G + 36 * (nt - G) and nt >= G and ks == 0:
            alloc(nt)
        for tt in range(2):
            b = ACC0 + 16 * blk[(nt, tt)]
            c = vr(b, 16) if (nt, tt) in first_use else "0"
            first_use.add((nt, tt))
            if no_mfma:
                S.emit("s_nop 7")
            else:
                S.emit(f"v_mfma_f32_32x32x16_bf16 {vr(b,16)}, {vr(AF[fi%4],4)}, {tok(tt,ks)}, {c}")
            if ks == 35:
                block_done_at[(nt, tt)] = S.ninstr
            left = budget
            nxt = min([k for k in seg_start if k > opened], default=None)
            if tt == 1 and nxt is not None and fi >= nxt - 3:
                open_segment(nxt); opened = nxt
                left -= 12
            while True:
                c_ = issue_read(fi if tt == 0 else fi + 1 if False else fi)
                if c_ == 0: break
                left -= c_
            gapno[0] += 1
            if left >= vmcost and loadq and gapno[0] - last_vm[0] >= vm_period:
                c_ = try_load()
                if c_: last_vm[0] = gapno[0]
                left -= c_
            while left > 0:
                if not epi:
                    ready = [k for k, v in block_done_at.items() if S.ninstr - v >= 12]
                    if not ready: break
                    k = sorted(ready, key=lambda x: block_done_at[x])[0]
                    del block_done_at[k]
                    epi.extend(make_epi(*k))
                op = epi[0]
                if cost[op[0]] > left: break
                epi.pop(0)
                left -= cost[op[0]]
                if op[0] == "st":
                    S.vm_issue(op[1], ("store",))
                    free_blocks.append(blk[op[2]])
                else:
                    S.emit(op[1])
    do_stamp()
    S.emit("s_nop 7"); S.emit("s_nop 3")
    while epi or block_done_at:
        if not epi:
            k = sorted(block_done_at, key=lambda x: block_done_at[x])[0]
            del block_done_at[k]
            epi.extend(make_epi(*k))
        op = epi.pop(0)
        if op[0] == "st":
            S.vm_issue(op[1], ("store",))
        else:
            S.emit(op[1])
    if stamp:
        do_stamp()
        A("s_waitcnt vmcnt(0)")
        do_stamp()
        A("s_memrealtime s[46:47]")
        A("s_waitcnt lgkmcnt(0)")
        A("s_lshl_b32 s44, s2, 2")
        A("s_add_u32 s44, s44, s12")
        A("s_lshl_b32 s44, s44, 6")
        A(f"s_add_u32 s44, s44, 0x{0x8000000:x}")
        A("v_mov_b32 v10, 0")
        A("s_mov_b64 exec, 1")
        for i in range(nstamp[0]):
            A(f"s_sub_u32 s45, s{50+2*i}, s40")
            A("v_mov_b32 v3, s45")
            A(f"buffer_store_dword v3, v10, s[8:11], s44 offen offset:{4*i}")
        A("s_sub_u32 s45, s46, s48")
        A("v_mov_b32 v3, s45")
        A(f"buffer_store_dword v3, v10, s[8:11], s44 offen offset:60")
    A.label(f"L_{name}_end")
    A("s_endpgm")
    return A.text() + kernel_desc(name, 512, 96, 256)

if __name__ == "__main__":
    t = gen_gemm1()
    print(t)
```

```python
from asm import *
from layout import *
from gemm1 import Sched, srd_ws

def wg_decode_g2(A):
    A("s_and_b32 s15, s2, 3")
    A("s_bfe_u32 s13, s2, 0x10002")
    A("s_lshl_b32 s13, s13, 3")
    A("s_bfe_u32 s14, s2, 0x30003")
    A("s_add_u32 s13, s13, s14")
    A("s_lshr_b32 s14, s2, 6")

def gen_gemm2(name="g2_kernel", budget=8, vmcost=16, vm_period=4, init_chunks=1, stamp=False, RING=8, st_flags=""):
    A = Asm()
    A.raw(kernel_header(name))
    AF = [20 + 4 * i for i in range(RING)]
    VL = [52, 53, 54, 55]
    ACC0 = 64
    def tok(tt, ks):
        i = tt * 36 + ks
        return ar(4 * i, 4) if i < 64 else vr(224 + 4 * (i - 64), 4)
    def acc(nt, tt): return ACC0 + 4 * (2 * nt + tt)
    A("s_cmp_ge_u32 s2, 256")
    A(f"s_cbranch_scc1 L_{name}_end")
    A("s_load_dwordx2 s[4:5], s[0:1], 80")
    if stamp:
        A("s_memtime s[40:41]")
        A("s_memrealtime s[48:49]")
    A("v_lshrrev_b32 v3, 6, v0")
    A("v_and_b32 v0, 63, v0")
    A("v_readfirstlane_b32 s12, v3")
    A("v_lshlrev_b32 v1, 4, v0")
    wg_decode_g2(A)
    A("s_lshl_b32 s16, s13, 3")
    A("s_lshl_b32 s17, s12, 1")
    A("s_add_u32 s16, s16, s17")
    A("s_mul_i32 s16, s16, 144")
    A("s_mul_i32 s17, s15, 36")
    A("s_add_u32 s16, s16, s17")
    A("s_lshl_b32 s16, s16, 10")
    A(f"s_add_u32 s16, s16, 0x{WS_ACT:x}")
    A("s_lshl_b32 s17, s14, 2")
    A("s_add_u32 s17, s17, s15")
    A(f"s_mul_i32 s17, s17, {36*9*1024}")
    A(f"s_add_u32 s17, s17, 0x{WS_WD:x}")
    A("s_mul_i32 s24, s12, 9216")
    A("s_add_u32 s23, s17, s24")
    A("s_lshl_b32 s20, s15, 4")
    A("s_add_u32 s20, s20, s13")
    A("s_lshl_b32 s20, s20, 2")
    A("s_add_u32 s20, s20, s14")
    A("s_lshl_b32 s20, s20, 2")
    A("s_add_u32 s20, s20, s12")
    A(f"s_mul_i32 s20, s20, {18*1024}")
    A(f"s_add_u32 s20, s20, 0x{WS_PART:x}")
    for s in range(4):
        A(f"v_add_u32 v{VL[s]}, {s*36864}, v1")
    A("s_waitcnt lgkmcnt(0)")
    srd_ws(A)
    S = Sched(A, budget)
    NCH = 9
    def dma_loads(c):
        items = []
        slot = c % 4
        for j in range(9):
            pre = []
            if j % 4 == 0:
                pre = [f"s_add_u32 m0, s24, {slot*36864 + j*1024}", f"s_add_u32 s27, s23, {c*36864 + j*1024}"]
            items.append((pre, f"buffer_load_dwordx4 v1, s[8:11], s27 offen offset:{(j%4)*1024} lds", ("chunk", c)))
        return items
    def tok_loads(c):
        items = []
        for tt in range(2):
            pre = [f"s_add_u32 s28, s16, {tt*144*1024 + 4096*c}"]
            for q in range(4):
                items.append((pre, f"buffer_load_dwordx4 {tok(tt, 4*c+q)}, v1, s[8:11], s28 offen offset:{q*1024}", ("chunk", c)))
                pre = []
        return items
    loadq = []
    for c in range(4): loadq += dma_loads(c) + tok_loads(c)
    later_tok = {c: tok_loads(c) for c in range(4, NCH)}
    def issue_item():
        pre, ins, tag = loadq.pop(0)
        for p in pre: S.emit(p)
        S.vm_issue(ins, tag)
        return 4 * len(pre) + vmcost
    def try_load():
        if not loadq or S.vm_outstanding() >= 62: return 0
        return issue_item()
    for _ in range(init_chunks * 17): try_load()
    frags = [(c, ksl, nt) for c in range(NCH) for ksl in range(4) for nt in range(9)]
    nfr = len(frags)
    seg_start = {36 * c: c for c in range(NCH)}
    lg = {"issued": 0, "done": 0}
    st = {"nread": 0, "opened": -1}
    nstamp = [0]
    def do_stamp():
        if not stamp: return
        i = nstamp[0]; nstamp[0] += 1
        S.emit(f"s_memtime s[{50+2*i}:{51+2*i}]")
    def open_segment(i0):
        c = seg_start[i0]
        if c >= 1 and lg["issued"] > lg["done"]:
            S.emit("s_waitcnt lgkmcnt(0)"); lg["done"] = lg["issued"]
        while any(it[2] == ("chunk", c) for it in loadq): issue_item()
        S.vm_wait(lambda t: t == ("chunk", c))
        S.emit("s_barrier")
        do_stamp()
        if c >= 1 and c + 3 < NCH:
            loadq.extend(dma_loads(c + 3) + later_tok[c + 3])
        st["opened"] = i0
    def issue_read(cur):
        n = st["nread"]
        if n >= nfr or n > cur + RING - 1: return 0
        if n in seg_start and n > st["opened"]: return 0
        c, ksl, nt = frags[n]
        S.emit(f"ds_read_b128 {vr(AF[n%RING],4)}, v{VL[c%4]} offset:{(ksl*9+nt)*1024}")
        lg["issued"] += 1; st["nread"] += 1
        return 4
    open_segment(0)
    for _ in range(RING - 1): issue_read(0)
    first = set()
    gap = 0; last_vm = -10
    for fi, (c, ksl, nt) in enumerate(frags):
        ks = 4 * c + ksl
        if lg["done"] < fi + 1:
            need = lg["issued"] - (fi + 1)
            S.emit(f"s_waitcnt lgkmcnt({need})"); lg["done"] = fi + 1
        for tt in range(2):
            b = acc(nt, tt)
            cc = vr(b, 4) if (nt, tt) in first else "0"
            first.add((nt, tt))
            S.emit(f"v_mfma_f32_16x16x32_bf16 {vr(b,4)}, {vr(AF[fi%RING],4)}, {tok(tt,ks)}, {cc}")
            gap += 1
            nxt = min([k for k in seg_start if k > st["opened"]], default=None)
            if tt == 1 and nxt is not None and fi >= nxt - (RING - 2):
                open_segment(nxt)
            if tt == 0 or True:
                issue_read(fi)
            if loadq and gap - last_vm >= vm_period and tt == 1:
                if try_load(): last_vm = gap
    do_stamp()
    S.emit("s_nop 7")
    for nt in range(9):
        for tt in range(2):
            i = 2 * nt + tt
            if i % 4 == 0: S.emit(f"s_add_u32 s29, s20, {i*1024}")
            S.vm_issue(f"buffer_store_dwordx4 {vr(acc(nt,tt),4)}, v1, s[8:11], s29 offen offset:{(i%4)*1024} {st_flags}", ("st",))
    if stamp:
        do_stamp()
        A("s_waitcnt vmcnt(0)")
        do_stamp()
        A("s_memrealtime s[46:47]")
        A("s_waitcnt lgkmcnt(0)")
        A("s_lshl_b32 s44, s2, 2")
        A("s_add_u32 s44, s44, s12")
        A("s_lshl_b32 s44, s44, 6")
        A(f"s_add_u32 s44, s44, 0x{0x8000000:x}")
        A("v_mov_b32 v10, 0")
        A("s_mov_b64 exec, 1")
        for i in range(nstamp[0]):
            A(f"s_sub_u32 s45, s{50+2*i}, s40")
            A("v_mov_b32 v3, s45")
            A(f"buffer_store_dword v3, v10, s[8:11], s44 offen offset:{4*i}")
        A("s_sub_u32 s45, s46, s48")
        A("v_mov_b32 v3, s45")
        A(f"buffer_store_dword v3, v10, s[8:11], s44 offen offset:60")
    A.label(f"L_{name}_end")
    A("s_endpgm")
    return A.text() + kernel_desc(name, 512, 96, 256)

def gen_reduce(name="rd_kernel"):
    A = Asm()
    A.raw(kernel_header(name))
    A("s_cmp_ge_u32 s2, 256")
    A(f"s_cbranch_scc1 L_{name}_end")
    A("s_load_dwordx2 s[4:5], s[0:1], 80")
    A("s_load_dwordx2 s[6:7], s[0:1], 64")
    A("v_lshrrev_b32 v3, 6, v0")
    A("v_and_b32 v0, 63, v0")
    A("v_readfirstlane_b32 s12, v3")
    A("v_lshlrev_b32 v1, 4, v0")
    A("s_lshr_b32 s13, s2, 4")
    A("s_bfe_u32 s14, s2, 0x20002")
    A("s_and_b32 s15, s2, 3")
    A("s_and_b32 s20, s2, 255")
    A(f"s_mul_i32 s20, s20, {18*1024}")
    A(f"s_add_u32 s20, s20, 0x{WS_PART:x}")
    A("s_lshl_b32 s16, s13, 2")
    A("s_add_u32 s16, s16, s15")
    A("v_and_b32 v4, 15, v0")
    A("v_lshlrev_b32 v5, 4, v4")
    A("v_bfe_u32 v6, v0, 5, 1")
    A("v_lshlrev_b32 v6, 9, v6")
    A("v_add_u32 v5, v5, v6")
    A("v_bfe_u32 v6, v0, 4, 1")
    A("v_lshlrev_b32 v6, 3, v6")
    A("v_add_u32 v5, v5, v6")
    A("v_mul_u32_u24 v7, 1152, v4")
    A("v_lshrrev_b32 v6, 4, v0")
    A("v_lshlrev_b32 v6, 3, v6")
    A("v_add_u32 v7, v7, v6")
    A("v_lshlrev_b32 v8, 2, v4")
    A("s_mul_i32 s17, s16, 36")
    A("s_mul_i32 s18, s14, 9")
    A("s_add_u32 s17, s17, s18")
    A("s_lshl_b32 s17, s17, 10")
    A(f"s_add_u32 s17, s17, 0x{WS_HC:x}")
    A("s_lshl_b32 s18, s16, 7")
    A(f"s_add_u32 s18, s18, 0x{WS_MU:x}")
    A("s_mul_i32 s19, s16, 36864")
    A("s_mul_i32 s21, s14, 288")
    A("s_add_u32 s19, s19, s21")
    A("s_waitcnt lgkmcnt(0)")
    srd_ws(A)
    A("s_mov_b32 s24, s6"); A("s_mov_b32 s25, s7"); A(f"s_mov_b32 s26, {2048*576*2}"); A("s_mov_b32 s27, 0x00020000")
    A("buffer_load_dword v10, v8, s[8:11], s18 offen")
    A("buffer_load_dword v11, v8, s[8:11], s18 offen offset:64")
    A("s_mov_b32 s22, s12")
    A.label(f"L_{name}_loop")
    PS = 16 * 4 * 4 * 18 * 1024
    A("s_lshl_b32 s23, s22, 10")
    A("s_add_u32 s23, s23, s20")
    for s in range(4):
        A(f"buffer_load_dwordx4 {vr(16+4*s,4)}, v1, s[8:11], s23 offen")
        if s < 3: A(f"s_add_u32 s23, s23, {PS}")
    A("s_lshr_b32 s28, s22, 1")
    A("s_and_b32 s29, s22, 1")
    A("s_lshl_b32 s30, s28, 10")
    A("s_lshl_b32 s31, s29, 8")
    A("s_add_u32 s30, s30, s31")
    A("s_add_u32 s30, s30, s17")
    A("buffer_load_dwordx2 v[32:33], v5, s[8:11], s30 offen")
    A("s_mul_i32 s30, s29, 18432")
    A("s_lshl_b32 s31, s28, 5")
    A("s_add_u32 s30, s30, s31")
    A("s_add_u32 s30, s30, s19")
    A("s_cmp_eq_u32 s29, 0")
    A("s_cselect_b64 vcc, -1, 0")
    A("s_waitcnt vmcnt(0)")
    A("v_cndmask_b32 v12, v11, v10, vcc")
    for r in range(4):
        A(f"v_add_f32 v{16+r}, v{16+r}, v{20+r}")
        A(f"v_add_f32 v{24+r}, v{24+r}, v{28+r}")
    A("v_lshlrev_b32 v34, 16, v32")
    A("v_and_b32 v35, 0xffff0000, v32")
    A("v_lshlrev_b32 v36, 16, v33")
    A("v_and_b32 v37, 0xffff0000, v33")
    for r in range(4):
        A(f"v_add_f32 v{16+r}, v{16+r}, v{24+r}")
        A(f"v_add_f32 v{34+r}, v{34+r}, v12")
    for r in range(4):
        A(f"v_add_f32 v{16+r}, v{16+r}, v{34+r}")
    A("v_cvt_pk_bf16_f32 v38, v16, v17")
    A("v_cvt_pk_bf16_f32 v39, v18, v19")
    A("buffer_store_dwordx2 v[38:39], v7, s[24:27], s30 offen")
    A("s_add_u32 s22, s22, 4")
    A("s_cmp_lt_u32 s22, 18")
    A(f"s_cbranch_scc1 L_{name}_loop")
    A.label(f"L_{name}_end")
    A("s_endpgm")
    return A.text() + kernel_desc(name, 64, 48, 64)

if __name__ == "__main__":
    print(gen_gemm2()); print(gen_reduce())
```

```python
WS_WA   = 0x0000000
WS_WO   = 0x0300000
WS_KV   = 0x0400000
WS_SSQ  = 0x0480000
WS_MU   = 0x0490000
WS_MUX  = 0x04A0000
WS_HC   = 0x0500000
WS_PHIQ = 0x0800000
WS_WGU  = 0x0D00000
WS_WD   = 0x1800000
WS_ACT  = 0x1E00000
WS_PART = 0x3000000
WS_BYTES = 0x10000000

K0 = -2.0 * 0.7978845608028654 * 1.4426950408889634
K1 = K0 * 0.044715
EPS = 1e-5
import struct
def f2u(x):
    return struct.unpack("<I", struct.pack("<f", x))[0]
```

```python
from asm import *
from layout import *
from gemm1 import srd_ws

N_FOLD, N_WBAR, N_WO, N_WGU, N_WD, N_ZERO = 80, 20, 16, 144, 144, 1
P0_WGS = N_FOLD + N_WBAR + N_WO + N_WGU + N_WD + N_ZERO

def srd_in(A, base, slot, nbytes):
    A(f"s_load_dwordx2 s[{base}:{base+1}], s[0:1], {slot*8}")
    A("s_waitcnt lgkmcnt(0)")
    A(f"s_mov_b32 s{base+2}, {nbytes}")
    A(f"s_mov_b32 s{base+3}, 0x00020000")

def udiv_small(A, dst, src, d, tmp_s):
    m = (65536 + d - 1) // d
    A(f"v_mul_u32_u24 v{dst}, {m}, v{src}")
    A(f"v_lshrrev_b32 v{dst}, 16, v{dst}")

def job_fold(A, nm, st_flags):
    A("s_mul_i32 s14, s3, 52429"); A("s_lshr_b32 s14, s14, 18")
    A("s_mul_i32 s15, s14, 5"); A("s_sub_u32 s15, s3, s15")
    A("s_lshl_b32 s13, s15, 2"); A("s_add_u32 s13, s13, s12")
    srd_in(A, 16, 1, 576 * 1728 * 2)
    srd_in(A, 20, 2, 32 * 18 * 18 * 2)
    A("v_bfe_u32 v4, v0, 2, 2")
    A("v_and_b32 v5, 3, v0")
    A("v_lshlrev_b32 v4, 3, v4")
    A("v_add_u32 v4, v4, v5")
    A("v_mul_u32_u24 v4, 3456, v4")
    A("v_lshrrev_b32 v7, 4, v0")
    A("v_lshlrev_b32 v8, 4, v7")
    A("v_add_u32 v9, v4, v8")
    A("v_add_u32 v10, 64, v9")
    A(f"v_add_u32 v11, {1152 - 32}, v9")
    A("v_cmp_gt_u32 vcc, 2, v7")
    A("s_nop 1")
    A("v_cndmask_b32 v10, v11, v10, vcc")
    A("s_min_u32 s24, s13, 17")
    A(f"s_mul_i32 s24, s24, {32*3456}")
    A("s_mul_i32 s25, s14, 72")
    A("s_add_u32 s24, s24, s25")
    AQ = 16
    AV = 40
    for hh in range(2):
        o = hh * 4 * 3456
        A(f"s_add_u32 s26, s24, {o}")
        A(f"buffer_load_dwordx4 {vr(AQ+8*0+4*hh,4)}, v9, s[16:19], s26 offen")
        A(f"buffer_load_dwordx4 {vr(AQ+8*1+4*hh,4)}, v10, s[16:19], s26 offen")
        A(f"s_add_u32 s26, s24, {o + 1152 + 32}")
        A(f"buffer_load_dwordx4 {vr(AQ+8*2+4*hh,4)}, v9, s[16:19], s26 offen")
        A(f"s_add_u32 s26, s24, {o + 2304}")
        A(f"buffer_load_dwordx4 {vr(AV+4*hh,4)}, v9, s[16:19], s26 offen")
        A(f"buffer_load_dwordx4 {vr(AV+8+4*hh,4)}, v9, s[16:19], s26 offen offset:64")
    A("v_mov_b32 v12, 0")
    A("v_lshlrev_b32 v13, 2, v15")
    A("ds_write_b32 v13, v12")
    A("ds_write_b32 v13, v12 offset:1024")
    A("s_waitcnt lgkmcnt(0)")
    A("s_barrier")
    for rnd in range(2):
        A(f"v_add_u32 v56, {256*rnd}, v15")
        udiv_small(A, 57, 56, 9, None)
        A("v_mul_u32_u24 v58, 9, v57")
        A("v_sub_u32 v58, v56, v58")
        A("v_mul_u32_u24 v59, 36, v57")
        A("v_lshlrev_b32 v60, 2, v58")
        A("v_add_u32 v59, v59, v60")
        A("v_mul_u32_u24 v61, 40, v57")
        A("v_add_u32 v61, v61, v60")
        A("v_mov_b32 v62, 0x7f000000")
        A("v_cmp_gt_u32 vcc, 324, v56")
        A("s_nop 1")
        A("v_cndmask_b32 v59, v62, v59, vcc")
        A("v_mov_b32 v62, 1600")
        A("v_cndmask_b32 v61, v62, v61, vcc")
        A("s_mul_i32 s26, s14, 1296")
        A(f"buffer_load_dword v63, v59, s[20:23], s26 offen")
        A("s_waitcnt vmcnt(0)")
        A("ds_write_b32 v61, v63")
    A("s_waitcnt lgkmcnt(0)")
    A("s_barrier")
    A("s_cmp_ge_u32 s13, 18")
    A(f"s_cbranch_scc1 L_{nm}_done")
    A("v_bfe_u32 v4, v0, 2, 2")
    A("v_and_b32 v5, 3, v0")
    A("v_lshlrev_b32 v6, 3, v7")
    A("v_add_u32 v6, v6, v4")
    A("v_and_b32 v8, 1, v5")
    A("v_mul_u32_u24 v9, 18, v8")
    A("v_lshrrev_b32 v10, 1, v5")
    A("v_mul_u32_u24 v10, 48, v10")
    A("v_add_u32 v9, v9, v10")
    A("v_mul_u32_u24 v10, 720, v8")
    BF = 64
    for stp in range(3):
        for hh in range(2):
            A(f"v_add_u32 v11, {32*stp + 4*hh}, v6")
            A("v_sub_u32 v11, v11, v9")
            A("v_mul_u32_u24 v12, 40, v11")
            A("v_add_u32 v12, v12, v10")
            A("v_mov_b32 v13, 1440")
            A("v_cmp_gt_u32 vcc, 18, v11")
            A("s_nop 1")
            A("v_cndmask_b32 v12, v13, v12, vcc")
            for t in range(5):
                A(f"ds_read_b64_tr_b16 {vr(BF+4*(3*t+stp)+2*hh,2)}, v12 offset:{8*t}")
            A("s_waitcnt lgkmcnt(0)")
    A("v_and_b32 v4, 15, v0")
    A("v_lshlrev_b32 v5, 3, v7")
    A("v_sub_u32 v4, v4, v5")
    SV = 124
    A("v_mov_b32 v8, 0x3f80"); A("v_mov_b32 v9, 0x3f800000")
    for tp in range(3):
        stp = 0 if tp < 2 else 1
        A(f"v_add_u32 v5, {16*tp - 32*stp}, v4")
        if tp == 2:
            A("v_and_b32 v6, 15, v0")
            A("v_cmp_lt_u32 vcc, 3, v6")
            A("v_mov_b32 v10, 99")
            A("s_nop 0")
            A("v_cndmask_b32 v5, v5, v10, vcc")
        for p in range(4):
            A(f"v_cmp_eq_u32 vcc, {2*p}, v5")
            A(f"v_cmp_eq_u32 s[28:29], {2*p+1}, v5")
            A("s_nop 1")
            A(f"v_cndmask_b32 v{SV+4*tp+p}, 0, v8, vcc")
            A(f"v_cndmask_b32 v{SV+4*tp+p}, v{SV+4*tp+p}, v9, s[28:29]")
    A("s_waitcnt vmcnt(0)")
    D = 136
    for t in range(5):
        for hh in range(2):
            d = D + 8 * t + 4 * hh
            for stp in range(3):
                c = vr(d, 4) if stp else "0"
                A(f"v_mfma_f32_16x16x32_bf16 {vr(d,4)}, {vr(AQ+8*stp+4*hh,4)}, {vr(BF+4*(3*t+stp),4)}, {c}")
    for tp in range(3):
        stp = 0 if tp < 2 else 1
        for hh in range(2):
            d = D + 8 * (5 + tp) + 4 * hh
            A(f"v_mfma_f32_16x16x32_bf16 {vr(d,4)}, {vr(AV+8*stp+4*hh,4)}, {vr(SV+4*tp,4)}, 0")
    A("s_nop 7")
    A(f"s_mul_i32 s26, s14, {144*1024}")
    A("s_lshl_b32 s27, s13, 13")
    A("s_add_u32 s26, s26, s27")
    A(f"s_add_u32 s26, s26, 0x{WS_WA:x}")
    for t in range(8):
        d = D + 8 * t
        o = 16 + 4 * t
        A(f"v_cvt_pk_bf16_f32 v{o}, v{d}, v{d+1}"); A(f"v_cvt_pk_bf16_f32 v{o+1}, v{d+2}, v{d+3}")
        A(f"v_cvt_pk_bf16_f32 v{o+2}, v{d+4}, v{d+5}"); A(f"v_cvt_pk_bf16_f32 v{o+3}, v{d+6}, v{d+7}")
        if t == 4: A("s_add_u32 s26, s26, 4096")
        A(f"buffer_store_dwordx4 {vr(o,4)}, v1, s[8:11], s26 offen offset:{(t%4)*1024} {st_flags}")
    A.label(f"L_{nm}_done")

def job_wbar(A, nm, st_flags):
    A("s_cmp_lg_u32 s12, 0")
    A(f"s_cbranch_scc1 L_{nm}_done")
    A("s_mul_i32 s14, s3, 52429"); A("s_lshr_b32 s14, s14, 18")
    A("s_mul_i32 s15, s14, 5"); A("s_sub_u32 s15, s3, s15")
    srd_in(A, 16, 3, 576 * 576 * 2)
    A("v_bfe_u32 v4, v0, 2, 2")
    A("v_and_b32 v5, 3, v0")
    A("v_lshrrev_b32 v7, 4, v0")
    A("v_lshlrev_b32 v7, 4, v7")
    for hh in range(2):
        A("s_lshl_b32 s24, s15, 3")
        A(f"s_add_u32 s24, s24, {4*hh}")
        A("v_add_u32 v8, s24, v5")
        udiv_small(A, 9, 8, 5, None)
        A("v_mul_u32_u24 v10, 5, v9")
        A("v_sub_u32 v10, v8, v10")
        A("v_mul_u32_u24 v11, 5, v4")
        A("v_add_u32 v10, v10, v11")
        A("s_lshl_b32 s25, s14, 3")
        A("v_add_u32 v9, s25, v9")
        A("v_mul_u32_u24 v9, 18, v9")
        A("v_add_u32 v9, v9, v10")
        A("v_mul_u32_u24 v9, 1152, v9")
        A("v_add_u32 v9, v9, v7")
        A("v_mov_b32 v11, 0x7f000000")
        A("v_cmp_gt_u32 vcc, 18, v10")
        A("s_nop 1")
        A(f"v_cndmask_b32 v{12+hh}, v11, v9, vcc")
    for hh in range(2):
        for stp in range(18):
            A(f"buffer_load_dwordx4 {vr(16+72*hh+4*stp,4)}, v{12+hh}, s[16:19], 0 offen offset:{64*stp}")
    A("v_mov_b32 v160, 0x3f803f80"); A("v_mov_b32 v161, 0x3f803f80"); A("v_mov_b32 v162, 0x3f803f80"); A("v_mov_b32 v163, 0x3f803f80")
    A("s_waitcnt vmcnt(0)")
    for hh in range(2):
        for stp in range(18):
            c = vr(164 + 4 * hh, 4) if stp else "0"
            A(f"v_mfma_f32_16x16x32_bf16 {vr(164+4*hh,4)}, {vr(16+72*hh+4*stp,4)}, v[160:163], {c}")
    A("s_nop 7")
    for i in range(8): A(f"v_mul_f32 v{164+i}, 0x{f2u(1/576):x}, v{164+i}")
    A("v_cvt_pk_bf16_f32 v16, v164, v165"); A("v_cvt_pk_bf16_f32 v17, v166, v167")
    A("v_cvt_pk_bf16_f32 v18, v168, v169"); A("v_cvt_pk_bf16_f32 v19, v170, v171")
    A("s_mul_i32 s24, s14, 50"); A("s_mul_i32 s25, s15, 10"); A("s_add_u32 s24, s24, s25")
    A("s_add_u32 s24, s24, 9"); A("s_lshl_b32 s24, s24, 10"); A(f"s_add_u32 s24, s24, 0x{WS_WO:x}")
    for ns in range(4):
        A(f"buffer_store_dwordx4 v[16:19], v1, s[8:11], s24 offen {st_flags}")
        if ns < 3: A(f"s_add_u32 s24, s24, {4*50*1024}")
    A.label(f"L_{nm}_done")

def job_wo(A, nm, st_flags):
    A("s_lshr_b32 s14, s3, 2"); A("s_and_b32 s15, s3, 3")
    srd_in(A, 16, 3, 576 * 576 * 2)
    udiv_small(A, 4, 0, 18, None)
    A("v_mul_u32_u24 v5, 18, v4")
    A("v_sub_u32 v5, v0, v5")
    A("v_mul_u32_u24 v6, 1152, v4")
    A("v_lshlrev_b32 v5, 4, v5")
    A("v_add_u32 v6, v6, v5")
    A("v_mov_b32 v7, 0x7f000000")
    A("v_cmp_gt_u32 vcc, 54, v0")
    A("s_nop 1")
    A("v_cndmask_b32 v6, v7, v6, vcc")
    A(f"s_mul_i32 s24, s14, {144*1152}")
    A("s_mul_i32 s25, s15, 288")
    A("s_add_u32 s24, s24, s25")
    A("s_mul_i32 s25, s12, 12")
    for b in range(12):
        A(f"s_add_u32 s26, s25, {b}")
        A("s_lshl_b32 m0, s26, 10")
        A(f"s_mul_i32 s27, s26, {3*1152}")
        A("s_add_u32 s27, s27, s24")
        A("buffer_load_dwordx4 v6, s[16:19], s27 offen lds")
    A("v_mov_b32 v8, 0"); A("v_lshlrev_b32 v9, 2, v15"); A("ds_write_b32 v9, v8 offset:49152")
    A("v_lshrrev_b32 v4, 4, v0")
    A("v_bfe_u32 v5, v0, 2, 2")
    A("v_and_b32 v7, 3, v0")
    A("v_lshlrev_b32 v7, 3, v7")
    AD = 16
    for e in range(5):
        for hh in range(2):
            A(f"v_add_u32 v8, {8*e+4*hh}, v5")
            udiv_small(A, 9, 8, 5, None)
            A("v_mul_u32_u24 v10, 5, v9")
            A("v_sub_u32 v10, v8, v10")
            A("v_mul_u32_u24 v11, 5, v4")
            A("v_add_u32 v10, v10, v11")
            A("v_mul_u32_u24 v9, 18, v9")
            A("v_add_u32 v9, v9, v10")
            udiv_small(A, 11, 9, 3, None)
            A("v_mul_u32_u24 v12, 3, v11")
            A("v_sub_u32 v12, v9, v12")
            A("v_mul_u32_u24 v12, 288, v12")
            A("v_lshlrev_b32 v11, 10, v11")
            A("v_add_u32 v11, v11, v12")
            A("v_mov_b32 v12, 49152")
            A("v_cmp_gt_u32 vcc, 18, v10")
            A("s_nop 1")
            A("v_cndmask_b32 v11, v12, v11, vcc")
            A(f"v_add_u32 v{AD+2*e+hh}, v11, v7")
    A("s_waitcnt vmcnt(0) lgkmcnt(0)")
    A("s_barrier")
    A("s_lshl_b32 s24, s15, 2"); A("s_add_u32 s24, s24, s14"); A("s_mul_i32 s24, s24, 51200")
    A(f"s_add_u32 s24, s24, 0x{WS_WO:x}")
    A("s_mov_b32 s25, s12")
    A.label(f"L_{nm}_loop")
    A("s_lshl_b32 s26, s25, 5")
    for e in range(5):
        for hh in range(2):
            A(f"v_add_u32 v30, s26, v{AD+2*e+hh}")
            A(f"ds_read_b64_tr_b16 {vr(32+4*e+2*hh,2)}, v30")
    A("s_lshl_b32 s27, s25, 10"); A("s_add_u32 s27, s27, s24")
    A("s_waitcnt lgkmcnt(0)")
    for e in range(5):
        A(f"buffer_store_dwordx4 {vr(32+4*e,4)}, v1, s[8:11], s27 offen {st_flags}")
        if e < 4: A("s_add_u32 s27, s27, 10240")
    A("s_add_u32 s25, s25, 4")
    A("s_cmp_lt_u32 s25, 9")
    A(f"s_cbranch_scc1 L_{nm}_loop")

def job_wgu(A, nm, st_flags):
    A("s_lshr_b32 s14, s3, 1"); A("s_and_b32 s15, s3, 1")
    srd_in(A, 16, 5, 576 * 4608 * 2)
    srd_in(A, 20, 6, 576 * 4608 * 2)
    A("v_lshrrev_b32 v4, 3, v0"); A("v_mul_u32_u24 v4, 9216, v4")
    A("v_and_b32 v5, 7, v0"); A("v_lshlrev_b32 v5, 4, v5"); A("v_add_u32 v4, v4, v5")
    A(f"s_mul_i32 s24, s15, {288*9216}")
    A("s_lshl_b32 s25, s14, 7"); A("s_add_u32 s24, s24, s25")
    A("s_mul_i32 s25, s12, 9")
    for mat in range(2):
        for b in range(9):
            A(f"s_add_u32 s26, s25, {b}")
            A("s_lshl_b32 s27, s26, 10")
            A(f"s_add_u32 m0, s27, {mat*36864}")
            A(f"s_mul_i32 s27, s26, {8*9216}")
            A("s_add_u32 s27, s27, s24")
            A(f"buffer_load_dwordx4 v4, s[{16+4*mat}:{19+4*mat}], s27 offen lds")
    A("v_bfe_u32 v5, v0, 4, 1"); A("v_mul_u32_u24 v5, 36864, v5")
    A("v_bfe_u32 v6, v0, 5, 1"); A("v_lshlrev_b32 v6, 3, v6")
    A("v_bfe_u32 v7, v0, 2, 2"); A("v_add_u32 v6, v6, v7"); A("v_lshlrev_b32 v6, 7, v6")
    A("v_add_u32 v5, v5, v6")
    A("v_and_b32 v7, 3, v0"); A("v_lshlrev_b32 v7, 3, v7"); A("v_add_u32 v5, v5, v7")
    A("s_lshl_b32 s26, s12, 5"); A("v_add_u32 v5, s26, v5")
    A("s_lshl_b32 s26, s14, 2"); A("s_add_u32 s26, s26, s12"); A("s_mul_i32 s26, s26, 36")
    A("s_mul_i32 s27, s15, 18"); A("s_add_u32 s26, s26, s27"); A("s_lshl_b32 s26, s26, 10")
    A(f"s_add_u32 s26, s26, 0x{WS_WGU:x}")
    A("s_waitcnt vmcnt(0)")
    A("s_barrier")
    for grp in range(3):
        for i in range(6):
            ks = 6 * grp + i
            A(f"ds_read_b64_tr_b16 {vr(16+4*i,2)}, v5 offset:{ks*2048}")
            A(f"ds_read_b64_tr_b16 {vr(18+4*i,2)}, v5 offset:{ks*2048+512}")
        A("s_waitcnt lgkmcnt(0)")
        for i in range(6):
            ks = 6 * grp + i
            if ks % 4 == 0 and ks: A("s_add_u32 s26, s26, 4096")
            A(f"buffer_store_dwordx4 {vr(16+4*i,4)}, v1, s[8:11], s26 offen offset:{(ks%4)*1024} {st_flags}")
        if grp < 2: A("s_nop 1")

def job_wd(A, nm, st_flags):
    srd_in(A, 16, 7, 4608 * 576 * 2)
    A("s_mul_i32 s24, s3, 36864")
    A("s_mul_i32 s25, s12, 9216")
    A("s_add_u32 s24, s24, s25")
    for j in range(9):
        if j % 4 == 0:
            A(f"s_add_u32 m0, s25, {j*1024}"); A(f"s_add_u32 s26, s24, {j*1024}")
        A(f"buffer_load_dwordx4 v1, s[16:19], s26 offen offset:{(j%4)*1024} lds")
    A("v_bfe_u32 v5, v0, 5, 1"); A("v_lshlrev_b32 v5, 4, v5")
    A("v_bfe_u32 v6, v0, 4, 1"); A("v_lshlrev_b32 v6, 2, v6"); A("v_add_u32 v5, v5, v6")
    A("v_bfe_u32 v6, v0, 2, 2"); A("v_add_u32 v5, v5, v6"); A("v_mul_u32_u24 v5, 1152, v5")
    A("v_and_b32 v6, 3, v0"); A("v_lshlrev_b32 v6, 3, v6"); A("v_add_u32 v5, v5, v6")
    A("s_mul_i32 s26, s12, 288"); A("v_add_u32 v5, s26, v5")
    A("s_mul_i32 s26, s12, 144"); A("s_add_u32 s26, s26, s3"); A("s_mul_i32 s26, s26, 9216")
    A(f"s_add_u32 s26, s26, 0x{WS_WD:x}")
    A("s_waitcnt vmcnt(0)")
    A("s_barrier")
    for nt in range(9):
        A(f"ds_read_b64_tr_b16 {vr(16+4*nt,2)}, v5 offset:{nt*32}")
        A(f"ds_read_b64_tr_b16 {vr(18+4*nt,2)}, v5 offset:{nt*32+8*1152}")
        if nt == 5: A("s_waitcnt lgkmcnt(4)")
    A("s_waitcnt lgkmcnt(0)")
    for nt in range(9):
        if nt % 4 == 0 and nt: A("s_add_u32 s26, s26, 4096")
        A(f"buffer_store_dwordx4 {vr(16+4*nt,4)}, v1, s[8:11], s26 offen offset:{(nt%4)*1024} {st_flags}")

def job_zero(A, nm, st_flags):
    A("v_mov_b32 v16, 0"); A("v_mov_b32 v17, 0"); A("v_mov_b32 v18, 0"); A("v_mov_b32 v19, 0")
    A("v_lshlrev_b32 v4, 4, v15")
    A(f"s_mov_b32 s24, 0x{WS_KV:x}")
    for i in range(22):
        A(f"buffer_store_dwordx4 v[16:19], v4, s[8:11], s24 offen {st_flags}")
        A("s_add_u32 s24, s24, 4096")

def gen_p0(name="p0_kernel", st_flags=""):
    A = Asm()
    A.raw(kernel_header(name))
    A(f"s_cmp_ge_u32 s2, {P0_WGS}")
    A(f"s_cbranch_scc1 L_{name}_end")
    A("s_load_dwordx2 s[4:5], s[0:1], 80")
    A("v_lshrrev_b32 v3, 6, v0")
    A("v_mov_b32 v15, v0")
    A("v_and_b32 v0, 63, v0")
    A("v_readfirstlane_b32 s12, v3")
    A("v_lshlrev_b32 v1, 4, v0")
    A("s_waitcnt lgkmcnt(0)")
    srd_ws(A)
    jobs = [("fold", N_FOLD, job_fold), ("wbar", N_WBAR, job_wbar), ("wo", N_WO, job_wo), ("zero", N_ZERO, job_zero),
            ("wgu", N_WGU, job_wgu), ("wd", N_WD, job_wd)]
    lo = 0
    for nm, n, fn in jobs:
        A(f"s_cmp_lt_u32 s2, {lo+n}")
        A(f"s_cbranch_scc1 L_{name}_{nm}")
        lo += n
    A("s_endpgm")
    lo = 0
    for nm, n, fn in jobs:
        A.label(f"L_{name}_{nm}")
        A(f"s_sub_u32 s3, s2, {lo}")
        fn(A, f"{name}_{nm}", st_flags)
        A("s_endpgm")
        lo += n
    A.label(f"L_{name}_end")
    A("s_endpgm")
    return A.text() + kernel_desc(name, 200, 64, 200)

if __name__ == "__main__":
    print(gen_p0())
```

```python
from asm import *
from layout import *
from gemm1 import srd_ws, Sched
from pb import stamps_dump
LOG2E = 1.4426950408889634

def gen_pa(name="pa_kernel", st_flags="", stamp=False, RING=8):
    A = Asm()
    A.raw(kernel_header(name))
    A("s_cmp_ge_u32 s2, 256")
    A(f"s_cbranch_scc1 L_{name}_end")
    A("s_load_dwordx2 s[4:5], s[0:1], 80")
    A("s_load_dwordx2 s[6:7], s[0:1], 0")
    nst = [0]
    def st():
        if stamp:
            A(f"s_memtime s[{50+2*nst[0]}:{51+2*nst[0]}]"); nst[0] += 1
    if stamp: A("s_memtime s[40:41]")
    A("v_lshrrev_b32 v3, 6, v0")
    A("v_mov_b32 v15, v0")
    A("v_and_b32 v0, 63, v0")
    A("v_readfirstlane_b32 s12, v3")
    A("v_lshlrev_b32 v1, 4, v0")
    A("s_and_b32 s14, s2, 3")
    A("s_lshl_b32 s14, s14, 2")
    A("s_bfe_u32 s15, s2, 0x20003")
    A("s_add_u32 s14, s14, s15")
    A("s_bfe_u32 s13, s2, 0x10002")
    A("s_lshl_b32 s13, s13, 3")
    A("s_lshr_b32 s15, s2, 5")
    A("s_add_u32 s13, s13, s15")
    X = 112; ACC = 48; AF = [16 + 4 * i for i in range(RING)]
    def xf(tt, ks): return X + 4 * (18 * tt + ks)
    def acc(t, tt): return ACC + 8 * t + 4 * tt
    TAIL = 128 * 1040
    A("s_lshl_b32 s16, s13, 7")
    A("s_lshl_b32 s17, s12, 5")
    A("s_add_u32 s16, s16, s17")
    A("s_mul_i32 s18, s16, 1152")
    A("s_mul_i32 s19, s17, 1040")
    A("s_lshl_b32 s20, s17, 7")
    A(f"s_add_u32 s20, s20, {TAIL}")
    A("v_lshrrev_b32 v4, 3, v0")
    A("v_mul_u32_u24 v4, 1152, v4")
    A("v_and_b32 v5, 7, v0")
    A("v_lshlrev_b32 v5, 4, v5")
    A("v_add_u32 v4, v4, v5")
    A("v_add_u32 v4, 1024, v4")
    A("s_waitcnt lgkmcnt(0)")
    srd_ws(A)
    A("s_mov_b32 s24, s6"); A("s_mov_b32 s25, s7"); A(f"s_mov_b32 s26, {2048*576*2}"); A("s_mov_b32 s27, 0x00020000")
    S = Sched(A)
    for r in range(32):
        A(f"s_add_u32 m0, s19, {r*1040}")
        A(f"s_add_u32 s21, s18, {r*1152}")
        S.vm_issue("buffer_load_dwordx4 v1, s[24:27], s21 offen lds", "x")
    for u in range(4):
        A(f"s_add_u32 m0, s20, {u*1024}")
        A(f"s_add_u32 s21, s18, {u*8*1152}")
        S.vm_issue("buffer_load_dwordx4 v4, s[24:27], s21 offen lds", "x")
    A("v_and_b32 v6, 15, v0")
    A("v_lshrrev_b32 v7, 4, v0")
    A("v_mul_u32_u24 v8, 1040, v6")
    A("v_lshlrev_b32 v9, 4, v7")
    A("v_add_u32 v8, v8, v9")
    A("v_add_u32 v8, s19, v8")
    A("v_lshlrev_b32 v10, 7, v6")
    A("v_add_u32 v10, v10, v9")
    A("v_add_u32 v10, s20, v10")
    S.vm_wait(lambda t: t == "x")
    st()
    for tt in range(2):
        for ks in range(18):
            if ks < 16: A(f"ds_read_b128 {vr(xf(tt,ks),4)}, v8 offset:{tt*16640+ks*64}")
            else: A(f"ds_read_b128 {vr(xf(tt,ks),4)}, v10 offset:{tt*2048+(ks-16)*64}")
            if (18 * tt + ks) % 12 == 11: A("s_waitcnt lgkmcnt(4)")
    A("s_waitcnt lgkmcnt(0)")
    A("s_barrier")
    A(f"s_mul_i32 s22, s14, {144*1024}")
    A(f"s_add_u32 s22, s22, 0x{WS_WA:x}")
    A("s_mul_i32 s23, s12, 6144")
    A("s_add_u32 s22, s22, s23")
    for c in range(6):
        for j in range(6):
            if j % 4 == 0:
                A(f"s_add_u32 m0, s23, {c*24576 + j*1024}")
                A(f"s_add_u32 s21, s22, {c*24576 + j*1024}")
            S.vm_issue(f"buffer_load_dwordx4 v1, s[8:11], s21 offen offset:{(j%4)*1024} lds", ("wa", c))
    A("s_mov_b32 s28, 0x3f803f80")
    SUM = [16, 17, 18, 19]; SQ = [20, 21, 22, 23]
    MEAN = [24, 25]
    for tt in range(2):
        for i in range(4):
            A(f"v_mov_b32 v{SUM[i]}, 0"); A(f"v_mov_b32 v{SQ[i]}, 0")
        regs = [X + 72 * tt + i for i in range(72)]
        for i, r in enumerate(regs):
            A(f"v_dot2_f32_bf16 v{SUM[i%4]}, v{r}, s28, v{SUM[i%4]}")
            A(f"v_dot2_f32_bf16 v{SQ[i%4]}, v{r}, v{r}, v{SQ[i%4]}")
        A("s_nop 2")
        A("v_add_f32 v16, v16, v17"); A("v_add_f32 v18, v18, v19"); A("v_add_f32 v20, v20, v21"); A("v_add_f32 v22, v22, v23")
        A("v_add_f32 v16, v16, v18"); A("v_add_f32 v20, v20, v22")
        for perm in ("v_permlane32_swap_b32", "v_permlane16_swap_b32"):
            A("v_mov_b32 v17, v16"); A("v_mov_b32 v21, v20")
            A("s_nop 1")
            A(f"{perm} v16, v17"); A(f"{perm} v20, v21")
            A("s_nop 1")
            A("v_add_f32 v16, v16, v17"); A("v_add_f32 v20, v20, v21")
        A(f"v_mul_f32 v{MEAN[tt]}, 0x{f2u(1/576):x}, v16")
        A(f"v_mul_f32 v20, 0x{f2u(1/576):x}, v20")
        A(f"v_fma_f32 v20, -v{MEAN[tt]}, v{MEAN[tt]}, v20")
        A(f"v_max_f32 v20, 0, v20")
        A(f"v_add_f32 v20, 0x{f2u(EPS):x}, v20")
        A("v_rsq_f32 v26, v20")
        A("s_nop 0")
        A(f"v_mul_f32 v27, v{MEAN[tt]}, v26")
        A("v_sub_f32 v27, 0, v27")
        for i, r in enumerate(regs):
            t0 = 28 + 2 * (i % 4)
            A(f"v_lshlrev_b32 v{t0}, 16, v{r}")
            A(f"v_and_b32 v{t0+1}, 0xffff0000, v{r}")
            A(f"v_pk_fma_f32 v[{t0}:{t0+1}], v[{t0}:{t0+1}], v[26:27], v[26:27] op_sel:[0,0,1] op_sel_hi:[1,0,1]")
            A(f"v_cvt_pk_bf16_f32 v{r}, v{t0}, v{t0+1}")
    A("s_cmp_lg_u32 s14, 0")
    A(f"s_cbranch_scc1 L_{name}_nomux")
    A("v_lshlrev_b32 v28, 2, v6")
    A("s_lshl_b32 s21, s16, 2")
    A(f"s_add_u32 s21, s21, 0x{WS_MUX:x}")
    A("s_mov_b64 exec, 0xffff")
    A(f"buffer_store_dword v{MEAN[0]}, v28, s[8:11], s21 offen {st_flags}")
    A(f"buffer_store_dword v{MEAN[1]}, v28, s[8:11], s21 offen offset:64 {st_flags}")
    A("s_mov_b64 exec, -1")
    A("s_waitcnt vmcnt(0)")
    A.label(f"L_{name}_nomux")
    st()
    VL = [2, 3, 4]
    A("v_mov_b32 v2, v1"); A("v_add_u32 v3, 65536, v1"); A("v_add_u32 v4, 131072, v1")
    frags = [(ks, t) for ks in range(18) for t in range(8)]
    nfr = len(frags)
    seg = {24 * c: c for c in range(6)}
    lg = {"issued": 0, "done": 0}; stt = {"nread": 0, "opened": -1}
    def open_seg(i0):
        c = seg[i0]
        S.vm_wait(lambda t: t == ("wa", c))
        A("s_barrier"); stt["opened"] = i0
    def issue_read(cur):
        n = stt["nread"]
        if n >= nfr or n > cur + RING - 1: return
        if n in seg and n > stt["opened"]: return
        off = n * 1024
        A(f"ds_read_b128 {vr(AF[n%RING],4)}, v{VL[off>>16]} offset:{off & 0xffff}")
        lg["issued"] += 1; stt["nread"] += 1
    open_seg(0)
    for _ in range(RING - 1): issue_read(0)
    for fi, (ks, t) in enumerate(frags):
        if lg["done"] < fi + 1:
            A(f"s_waitcnt lgkmcnt({lg['issued'] - fi - 1})"); lg["done"] = fi + 1
        for tt in range(2):
            d = acc(t, tt); c = vr(d, 4) if ks else "0"
            if t < 5: A(f"v_mfma_f32_16x16x32_bf16 {vr(d,4)}, {vr(AF[fi%RING],4)}, {vr(xf(tt,ks),4)}, {c}")
            else:     A(f"v_mfma_f32_16x16x32_bf16 {vr(d,4)}, {vr(xf(tt,ks),4)}, {vr(AF[fi%RING],4)}, {c}")
            nxt = min([k for k in seg if k > stt["opened"]], default=None)
            if tt == 1 and nxt is not None and fi >= nxt - (RING - 2): open_seg(nxt)
            issue_read(fi)
    A("s_nop 7")
    st()
    A("s_barrier")
    A(f"s_mov_b32 s29, 0x{f2u(LOG2E):x}")
    EP = 112; EM = 130; PK = [148, 168]
    def val(tt, s): return ACC + 8 * (s >> 2) + 4 * tt + (s & 3)
    for tt in range(2):
        v = [val(tt, s) for s in range(18)]
        A(f"v_max3_f32 v16, v{v[0]}, v{v[1]}, v{v[2]}"); A(f"v_min3_f32 v17, v{v[0]}, v{v[1]}, v{v[2]}")
        for i in range(3, 17, 2):
            A(f"v_max3_f32 v16, v16, v{v[i]}, v{v[i+1]}"); A(f"v_min3_f32 v17, v17, v{v[i]}, v{v[i+1]}")
        A(f"v_max_f32 v16, v16, v{v[17]}"); A(f"v_min_f32 v17, v17, v{v[17]}")
        A("v_mul_f32 v16, s29, v16"); A("v_mul_f32 v17, s29, v17")
        A("v_sub_f32 v16, 0, v16")
        for s in range(18):
            A(f"v_fma_f32 v{EP+s}, v{v[s]}, s29, v16")
            A(f"v_fma_f32 v{EM+s}, -v{v[s]}, s29, v17")
        for s in range(18):
            A(f"v_exp_f32 v{EP+s}, v{EP+s}"); A(f"v_exp_f32 v{EM+s}, v{EM+s}")
        A("s_nop 0")
        A(f"v_add_f32 v18, v{EP}, v{EP+1}"); A(f"v_add_f32 v19, v{EM}, v{EM+1}")
        A(f"v_add_f32 v20, v{EP+2}, v{EP+3}"); A(f"v_add_f32 v21, v{EM+2}, v{EM+3}")
        for s in range(4, 18, 2):
            A(f"v_add_f32 v18, v18, v{EP+s}"); A(f"v_add_f32 v19, v19, v{EM+s}")
            A(f"v_add_f32 v20, v20, v{EP+s+1}"); A(f"v_add_f32 v21, v21, v{EM+s+1}")
        A("v_add_f32 v18, v18, v20"); A("v_add_f32 v19, v19, v21")
        A("v_rcp_f32 v18, v18"); A("v_rcp_f32 v19, v19")
        A("s_nop 0")
        for s in range(18):
            A(f"v_mul_f32 v{EP+s}, v{EP+s}, v18"); A(f"v_mul_f32 v{EM+s}, v{EM+s}, v19")
        for i in range(9):
            A(f"v_cvt_pk_bf16_f32 v{PK[tt]+i}, v{EP+2*i}, v{EP+2*i+1}")
            A(f"v_cvt_pk_bf16_f32 v{PK[tt]+9+i}, v{EM+2*i}, v{EM+2*i+1}")
    st()
    RSK = 152; VBO = 20480; KVO = 36864
    A("v_and_b32 v16, 1, v7")
    A("v_mul_u32_u24 v17, 1152, v16")
    A("v_lshlrev_b32 v18, 4, v6")
    A("v_add_u32 v18, v18, v17")
    A("v_lshlrev_b32 v19, 3, v6")
    A("v_add_u32 v19, v19, v17")
    A("v_add_u32 v19, 1024, v19")
    A("s_lshl_b32 s21, s13, 3"); A("s_lshl_b32 s23, s12, 1"); A("s_add_u32 s21, s21, s23")
    A("s_lshl_b32 s21, s21, 5"); A("s_lshl_b32 s23, s14, 1"); A("s_add_u32 s21, s21, s23")
    A("s_mul_i32 s21, s21, 1152"); A(f"s_add_u32 s21, s21, 0x{WS_PHIQ:x}")
    A(f"v_mul_u32_u24 v20, {RSK}, v6")
    A("v_mul_u32_u24 v21, 72, v16")
    A("v_add_u32 v20, v20, v21")
    A(f"s_mul_i32 s23, s12, {32*RSK}")
    A("v_add_u32 v20, s23, v20")
    A("s_mov_b32 exec_lo, -1"); A("s_mov_b32 exec_hi, 0")
    for tt in range(2):
        A(f"s_add_u32 s30, s21, {tt*32*1152}")
        for qp in range(4):
            A(f"buffer_store_dwordx4 {vr(PK[tt]+4*qp,4)}, v18, s[8:11], s30 offen offset:{qp*256} {st_flags}")
        A(f"buffer_store_dwordx2 {vr(PK[tt]+16,2)}, v19, s[8:11], s30 offen {st_flags}")
    A("s_mov_b32 exec_lo, 0"); A("s_mov_b32 exec_hi, -1")
    for tt in range(2):
        for i in range(9):
            A(f"ds_write_b64 v20, {vr(PK[tt]+2*i,2)} offset:{tt*16*RSK+8*i}")
    A("s_mov_b64 exec, -1")
    VB = 16 + 8
    for C in range(3):
        d0 = acc(5 + C, 0); d1 = acc(5 + C, 1); b = 24 + 4 * C
        A(f"v_cvt_pk_bf16_f32 v{b}, v{d0}, v{d0+1}"); A(f"v_cvt_pk_bf16_f32 v{b+1}, v{d0+2}, v{d0+3}")
        A(f"v_cvt_pk_bf16_f32 v{b+2}, v{d1}, v{d1+1}"); A(f"v_cvt_pk_bf16_f32 v{b+3}, v{d1+2}, v{d1+3}")
    A("v_mov_b32 v21, 0x3f803f80")
    A("v_cmp_eq_u32 vcc, 4, v6")
    A("s_nop 1")
    for r in range(4): A(f"v_cndmask_b32 v{32+r}, v{32+r}, v21, vcc")
    A(f"s_mul_i32 s23, s12, 3072")
    A(f"s_add_u32 s23, s23, {VBO}")
    A("v_add_u32 v22, s23, v1")
    for C in range(3): A(f"ds_write_b128 v22, {vr(24+4*C,4)} offset:{C*1024}")
    A("s_waitcnt lgkmcnt(0)")
    A("s_barrier")
    A("v_bfe_u32 v16, v0, 2, 2")
    A("v_lshlrev_b32 v17, 2, v7")
    A("v_add_u32 v16, v16, v17")
    A(f"v_mul_u32_u24 v16, {RSK}, v16")
    A("v_and_b32 v17, 3, v0")
    A("v_lshlrev_b32 v17, 3, v17")
    A("v_add_u32 v16, v16, v17")
    D = 48
    for i in range(4):
        A(f"s_add_u32 s30, s12, {4*i}")
        A("s_min_u32 s30, s30, 14")
        A("s_mul_i32 s31, s30, 43"); A("s_lshr_b32 s31, s31, 7")
        A("s_mul_i32 s32, s31, 3"); A("s_sub_u32 s32, s30, s32")
        A("s_lshl_b32 s33, s31, 5")
        A("v_add_u32 v17, s33, v16")
        A("s_lshl_b32 s33, s32, 10"); A(f"s_add_u32 s33, s33, {VBO}")
        A("v_add_u32 v18, s33, v1")
        A(f"s_mov_b32 s{34+2*i}, s31"); A(f"s_mov_b32 s{35+2*i}, s32")
        for wp in range(4):
            a = 64 + 8 * wp
            A(f"ds_read_b64_tr_b16 {vr(a,2)}, v17 offset:{wp*32*RSK}")
            A(f"ds_read_b64_tr_b16 {vr(a+2,2)}, v17 offset:{wp*32*RSK+16*RSK}")
            A(f"ds_read_b128 {vr(a+4,4)}, v18 offset:{wp*3072}")
        A("s_waitcnt lgkmcnt(0)")
        for wp in range(4):
            a = 64 + 8 * wp
            c = vr(D + 4 * i, 4) if wp else "0"
            A(f"v_mfma_f32_16x16x32_bf16 {vr(D+4*i,4)}, {vr(a,4)}, {vr(a+4,4)}, {c}")
    for i in range(4):
        R = 34 + 2 * i; C = 35 + 2 * i
        A(f"s_lshl_b32 s30, s{R}, 4")
        A(f"s_lshl_b32 s31, s{C}, 4")
        A("v_lshlrev_b32 v17, 2, v7")
        A("v_add_u32 v17, s30, v17")
        A("v_add_u32 v18, s31, v6")
        A("v_cmp_le_u32 vcc, 36, v17")
        A("s_nop 1")
        A("v_cndmask_b32 v19, 0, 1, vcc")
        A("v_mul_u32_u24 v20, 36, v19")
        A("v_sub_u32 v20, v17, v20")
        A("v_mul_u32_u24 v21, 18, v19")
        A("v_sub_u32 v21, v18, v21")
        A("v_cmp_gt_u32 s[42:43], 18, v21")
        A("v_cmp_eq_u32 s[44:45], 36, v18")
        A("v_mov_b32 v22, 18")
        A("s_nop 0")
        A("v_cndmask_b32 v21, v21, v22, s[44:45]")
        A("s_or_b64 s[42:43], s[42:43], s[44:45]")
        A("v_cmp_gt_u32 vcc, 72, v17")
        A("s_nop 1")
        A("s_and_b64 s[42:43], s[42:43], vcc")
        A("v_mul_u32_u24 v19, 684, v19")
        A("v_mul_u32_u24 v21, 36, v21")
        A("v_add3_u32 v19, v19, v21, v20")
        A("v_lshlrev_b32 v19, 2, v19")
        A(f"v_add_u32 v19, {KVO}, v19")
        A(f"v_mov_b32 v22, {KVO + 5504}")
        A("v_cndmask_b32 v19, v22, v19, s[42:43]")
        if i == 0: A("s_nop 7")
        if i == 3:
            pass
        A(f"ds_write_b128 v19, {vr(D+4*i,4)}")
    A("s_waitcnt lgkmcnt(0)")
    A("s_barrier")
    A("v_lshlrev_b32 v16, 2, v15")
    A(f"v_add_u32 v17, {KVO}, v16")
    A(f"s_mul_i32 s30, s14, {1368*4}")
    A(f"s_add_u32 s30, s30, 0x{WS_KV:x}")
    for i in range(6):
        A(f"ds_read_b32 v{24+i}, v17 offset:{i*1024}")
    A("v_mov_b32 v18, 0x7f000000")
    A(f"v_cmp_gt_u32 vcc, {1368-1280}, v15")
    A("s_nop 1")
    A("v_add_u32 v19, 1024, v16")
    A("v_cndmask_b32 v19, v18, v19, vcc")
    A("s_waitcnt lgkmcnt(0)")
    for i in range(4):
        A(f"buffer_atomic_add_f32 v{24+i}, v16, s[8:11], s30 offen offset:{i*1024}")
    A("s_add_u32 s30, s30, 4096")
    A(f"buffer_atomic_add_f32 v28, v16, s[8:11], s30 offen")
    A(f"buffer_atomic_add_f32 v29, v19, s[8:11], s30 offen")
    st()
    if stamp: stamps_dump(A, nst[0], name)
    A.label(f"L_{name}_end")
    A("s_endpgm")
    return A.text() + kernel_desc(name, 256, 96, 256)

if __name__ == "__main__":
    print(gen_pa())
```

```python
from asm import *
from layout import *
from gemm1 import srd_ws, Sched

def stamps_dump(A, n, name):
    A("s_waitcnt vmcnt(0) lgkmcnt(0)")
    A("s_lshl_b32 s44, s2, 2")
    A("s_add_u32 s44, s44, s12")
    A("s_lshl_b32 s44, s44, 6")
    A(f"s_add_u32 s44, s44, 0x{0x8000000:x}")
    A("v_mov_b32 v10, 0")
    A("s_mov_b64 exec, 1")
    for i in range(n):
        A(f"s_sub_u32 s45, s{50+2*i}, s40")
        A("v_mov_b32 v3, s45")
        A(f"buffer_store_dword v3, v10, s[8:11], s44 offen offset:{4*i}")

def gen_pb(name="pb_kernel", ld_flags="", st_flags="", stamp=False):
    A = Asm()
    A.raw(kernel_header(name))
    A("s_cmp_ge_u32 s2, 256")
    A(f"s_cbranch_scc1 L_{name}_end")
    A("s_load_dwordx2 s[4:5], s[0:1], 80")
    A("s_load_dwordx2 s[6:7], s[0:1], 0")
    nst = [0]
    def st():
        if stamp:
            A(f"s_memtime s[{50+2*nst[0]}:{51+2*nst[0]}]"); nst[0] += 1
    if stamp: A("s_memtime s[40:41]")
    A("v_lshrrev_b32 v3, 6, v0")
    A("v_and_b32 v0, 63, v0")
    A("v_readfirstlane_b32 s12, v3")
    A("v_lshlrev_b32 v1, 4, v0")
    A("s_bfe_u32 s14, s2, 0x20003")
    A("s_and_b32 s13, s2, 7")
    A("s_lshr_b32 s15, s2, 5")
    A("s_lshl_b32 s15, s15, 3")
    A("s_add_u32 s13, s13, s15")
    WO = 0
    KVT = 16
    B1 = 104
    B2 = 168
    A("s_lshl_b32 s16, s14, 2")
    A("s_add_u32 s16, s16, s12")
    A("s_mul_i32 s16, s16, 51200")
    A(f"s_add_u32 s16, s16, 0x{WS_WO:x}")
    A(f"s_mul_i32 s17, s12, {8*684*4}")
    A(f"s_add_u32 s17, s17, 0x{WS_KV:x}")
    A("s_lshl_b32 s18, s13, 6")
    A("s_lshl_b32 s19, s12, 3")
    A("s_add_u32 s18, s18, s19")
    A("s_mul_i32 s18, s18, 1152")
    A(f"s_add_u32 s18, s18, 0x{WS_PHIQ:x}")
    A("v_lshlrev_b32 v2, 3, v0")
    A("v_add_u32 v2, 1024, v2")
    A("v_mov_b32 v4, 0x7f000000")
    A("v_cmp_gt_u32 vcc, 16, v0")
    A("s_nop 1")
    A("v_cndmask_b32 v2, v4, v2, vcc")
    A("s_waitcnt lgkmcnt(0)")
    srd_ws(A)
    A("s_mov_b32 s24, s6"); A("s_mov_b32 s25, s7"); A(f"s_mov_b32 s26, {2048*576*2}"); A("s_mov_b32 s27, 0x00020000")
    S = Sched(A)
    for i in range(22):
        if i % 4 == 0: A(f"s_add_u32 s20, s17, {i*1024}")
        S.vm_issue(f"buffer_load_dwordx4 {vr(KVT+4*i,4)}, v1, s[8:11], s20 offen offset:{(i%4)*1024} {ld_flags}", "kv")
    for hl in range(8):
        for tt in range(2):
            A(f"s_add_u32 s20, s18, {(tt*32+hl)*1152}")
            S.vm_issue(f"buffer_load_dwordx4 {vr(B1+4*(2*hl+tt),4)}, v1, s[8:11], s20 offen {ld_flags}", ("phi", hl))
            S.vm_issue(f"buffer_load_dwordx2 {vr(B2+2*(2*hl+tt),2)}, v2, s[8:11], s20 offen {ld_flags}", ("phi", hl))
    woq = list(range(50))
    def pump(maxn=99):
        n = 0
        while woq and S.vm_outstanding() < 62 and n < maxn:
            i = woq.pop(0)
            A(f"s_add_u32 s22, s16, {i*1024}")
            S.vm_issue(f"buffer_load_dwordx4 {ar(WO+4*i,4)}, v1, s[8:11], s22 offen", ("wo", i // 10))
            n += 1
    pump()
    KVL = 11264
    A(f"s_mul_i32 s21, s12, {KVL}")
    A("v_lshlrev_b32 v5, 3, v0")
    A("v_add_u32 v5, s21, v5")
    A("v_bfe_u32 v6, v0, 2, 2")
    A("v_and_b32 v7, 3, v0")
    A("v_mul_u32_u24 v8, 5, v6")
    A("v_add_u32 v9, v8, v7")
    A("v_subrev_u32 v9, 1, v9")
    A("v_mov_b32 v10, 18")
    A("v_cmp_eq_u32 vcc, 0, v7")
    A("s_nop 1")
    A("v_cndmask_b32 v9, v9, v10, vcc")
    A("v_add_u32 v11, v8, v7")
    A("v_add_u32 v11, 3, v11")
    A("v_min_u32 v11, 18, v11")
    A("v_mul_u32_u24 v9, 72, v9")
    A("v_mul_u32_u24 v11, 72, v11")
    A("v_lshrrev_b32 v12, 4, v0")
    A("v_lshlrev_b32 v13, 4, v12")
    A("v_lshlrev_b32 v14, 3, v12")
    A("v_add_u32 v9, s21, v9")
    A("v_add_u32 v11, s21, v11")
    A("v_add_u32 v6, v9, v13")
    A("v_add_u32 v7, v11, v13")
    A("v_add_u32 v8, v9, v14")
    A("v_add_u32 v10, v11, v14")
    RA1 = [6, 7]; RA2 = [8, 10]
    S.vm_wait(lambda t: t == "kv")
    st()
    for i in range(22):
        b = KVT + 4 * i
        A(f"v_cvt_pk_bf16_f32 v{b}, v{b}, v{b+1}")
        A(f"v_cvt_pk_bf16_f32 v{b+1}, v{b+2}, v{b+3}")
        A(f"ds_write_b64 v5, {vr(b,2)} offset:{i*512}")
        if i % 4 == 3: pump(2)
    A("s_waitcnt lgkmcnt(0)")
    AF = 16
    OD = 40
    OS = 72
    OV = [200, 224]
    OB = 200
    pend = {0: None, 1: None}
    def a_reads(hl):
        base = AF + 12 * (hl & 1)
        for rho in range(2):
            A(f"ds_read2_b64 {vr(base+6*rho,4)}, v{RA1[rho]} offset0:{hl*171} offset1:{hl*171+1}")
            A(f"ds_read_b64 {vr(base+6*rho+4,2)}, v{RA2[rho]} offset:{hl*1368+64}")
    assert 7 * 171 + 1 <= 255 or True
    A.lines = A.lines
    TA = [11, 12]
    A(f"v_mov_b32 v{TA[0]}, v{RA1[0]}"); A(f"v_mov_b32 v{TA[1]}, v{RA1[1]}")
    def a_reads2(hl):
        base = AF + 12 * (hl & 1)
        for rho in range(2):
            A(f"ds_read2_b64 {vr(base+6*rho,4)}, v{TA[rho]} offset0:0 offset1:1")
            A(f"ds_read_b64 {vr(base+6*rho+4,2)}, v{RA2[rho]} offset:{hl*1368+64}")
        if hl < 7:
            A(f"v_add_u32 v{TA[0]}, 1368, v{TA[0]}"); A(f"v_add_u32 v{TA[1]}, 1368, v{TA[1]}")
    a_reads2(0)
    TMP = 13
    for hl in range(8):
        if hl < 7: a_reads2(hl + 1)
        S.vm_wait(lambda t: t == ("phi", hl))
        A(f"s_waitcnt lgkmcnt({4 if hl < 7 else 0})")
        base = AF + 12 * (hl & 1)
        od = OD + 16 * (hl & 1)
        for tt in range(2):
            for rho in range(2):
                d = od + 8 * tt + 4 * rho
                A(f"v_mfma_f32_16x16x32_bf16 {vr(d,4)}, {vr(base+6*rho,4)}, {vr(B1+4*(2*hl+tt),4)}, 0")
        A("s_nop 2")
        for tt in range(2):
            for rho in range(2):
                d = od + 8 * tt + 4 * rho
                A(f"v_mfma_f32_16x16x16_bf16 {vr(d,4)}, {vr(base+6*rho+4,2)}, {vr(B2+2*(2*hl+tt),2)}, {vr(d,4)}")
        pump(4)
        def finish(h):
            o = OD + 16 * (h & 1)
            for tt in range(2):
                d0 = o + 8 * tt
                A(f"v_add_f32 v{d0}, 0x{f2u(1e-6):x}, v{d0}")
            for tt in range(2):
                d0 = o + 8 * tt
                A(f"v_rcp_f32 v{d0}, v{d0}")
            A("s_nop 0")
            for tt in range(2):
                d0 = o + 8 * tt
                vals = [d0 + 1, d0 + 2, d0 + 3, d0 + 4, d0 + 5]
                for x_ in vals: A(f"v_mul_f32 v{x_}, v{x_}, v{d0}")
            for tt in range(2):
                d0 = o + 8 * tt
                vals = [d0 + 1, d0 + 2, d0 + 3, d0 + 4, d0 + 5]
                for s_, x_ in enumerate(vals):
                    u = 5 * h + s_
                    if u % 2 == 0:
                        if s_ == 4:
                            A(f"v_mov_b32 v{14+tt}, v{x_}"); pend[tt] = 14 + tt
                        else:
                            pend[tt] = x_
                    else:
                        A(f"v_cvt_pk_bf16_f32 v{OB+20*tt+u//2}, v{pend[tt]}, v{x_}")
        if hl > 0: finish(hl - 1)
    A("s_nop 7")
    o_ = 7
    def finish_last():
        pass
    finish(7)
    st()
    ACC = 16
    for e in range(5):
        while any(i // 10 == e for i in woq):
            S.emit(f"s_waitcnt vmcnt({max(S.vm_outstanding() - 16, 0)})"); S.vm_done_upto = len(S.vm.ops) - max(S.vm_outstanding() - 16, 0)
            pump()
        S.vm_wait(lambda t: t == ("wo", e))
        pump()
        if e == 0: A("s_nop 1")
        for nt in range(10):
            for tt in range(2):
                d = ACC + 8 * nt + 4 * tt
                c = vr(d, 4) if e else "0"
                A(f"v_mfma_f32_16x16x32_bf16 {vr(d,4)}, {ar(WO+4*(10*e+nt),4)}, {vr(OB+20*tt+4*e,4)}, {c}")
    st()
    RED = 45056
    A(f"s_mul_i32 s21, s12, {20*1024}")
    A(f"s_add_u32 s21, s21, {RED}")
    A("v_add_u32 v5, s21, v1")
    A("s_and_b32 s28, s12, 1")
    A("s_lshr_b32 s29, s12, 1")
    A("v_and_b32 v6, 15, v0")
    A("v_mul_u32_u24 v7, 1152, v6")
    A("v_lshrrev_b32 v8, 4, v0")
    A("v_lshlrev_b32 v8, 3, v8")
    A("v_add_u32 v7, v7, v8")
    A("s_lshl_b32 s30, s13, 1")
    A("s_add_u32 s30, s30, s28")
    A("s_mul_i32 s31, s30, 18432")
    A("s_mul_i32 s32, s14, 288")
    A("s_add_u32 s31, s31, s32")
    A("s_mul_i32 s32, s29, 160")
    A("s_add_u32 s31, s31, s32")
    XR = 100
    for j in range(5):
        S.vm_issue(f"buffer_load_dwordx2 {vr(XR+2*j,2)}, v7, s[24:27], s31 offen offset:{j*32}", "x")
    A("v_lshlrev_b32 v8, 2, v6")
    A("s_lshl_b32 s32, s30, 6")
    A(f"s_add_u32 s33, s32, 0x{WS_MUX:x}")
    S.vm_issue(f"buffer_load_dword v110, v8, s[8:11], s33 offen {ld_flags}", "x")
    A("s_nop 7")
    for nt in range(10):
        for tt in range(2):
            A(f"ds_write_b128 v5, {vr(ACC+8*nt+4*tt,4)} offset:{(2*nt+tt)*1024}")
    A("s_waitcnt lgkmcnt(0)")
    A("s_barrier")
    A("s_mul_i32 s34, s29, 10240")
    A("s_lshl_b32 s35, s28, 10")
    A("s_add_u32 s34, s34, s35")
    A(f"s_add_u32 s34, s34, {RED}")
    A("v_add_u32 v5, s34, v1")
    A(f"s_add_u32 s36, s35, {RED + 18*1024}")
    A("v_add_u32 v9, s36, v1")
    P = 16
    for wp in range(4):
        A(f"ds_read_b128 {vr(112+4*wp,4)}, v9 offset:{wp*20480}")
    A("s_waitcnt lgkmcnt(0)")
    A("v_add_u32 v111, 40960, v5")
    for wp in range(4):
        for j in range(5):
            A(f"ds_read_b128 {vr(P+20*wp+4*j,4)}, v{5 if wp < 2 else 111} offset:{(wp%2)*20480+j*2048}")
            if (5 * wp + j) % 10 == 9: A("s_waitcnt lgkmcnt(4)")
    A("v_add_f32 v112, v112, v116")
    A("v_add_f32 v120, v120, v124")
    A("v_add_f32 v112, v112, v120")
    S.vm_wait(lambda t: t == "x")
    A("v_add_f32 v112, v112, v110")
    A("s_waitcnt lgkmcnt(0)")
    A("v_mov_b32 v113, 0")
    A("s_cmp_eq_u32 s29, 0")
    A("s_cselect_b32 s37, 1.0, 0")
    for j in range(5):
        for r in range(4):
            a = P + 4 * j + r
            A(f"v_add_f32 v{a}, v{a}, v{a+20}")
            A(f"v_add_f32 v{a+40}, v{a+40}, v{a+60}")
        A(f"v_lshlrev_b32 v114, 16, v{XR+2*j}")
        A(f"v_and_b32 v115, 0xffff0000, v{XR+2*j}")
        A(f"v_lshlrev_b32 v116, 16, v{XR+2*j+1}")
        A(f"v_and_b32 v117, 0xffff0000, v{XR+2*j+1}")
        for r in range(4):
            a = P + 4 * j + r
            A(f"v_add_f32 v{a}, v{a}, v{a+40}")
            A(f"v_sub_f32 v{114+r}, v{114+r}, v112")
        for r in range(4):
            a = P + 4 * j + r
            A(f"v_add_f32 v{a}, v{a}, v{114+r}")
        A(f"v_cvt_pk_bf16_f32 v{128+2*j}, v{P+4*j}, v{P+4*j+1}")
        A(f"v_cvt_pk_bf16_f32 v{129+2*j}, v{P+4*j+2}, v{P+4*j+3}")
        if j < 4:
            for r in range(4): A(f"v_fmac_f32 v113, v{P+4*j+r}, v{P+4*j+r}")
        else:
            A("v_mov_b32 v118, 0")
            for r in range(4): A(f"v_fmac_f32 v118, v{P+4*j+r}, v{P+4*j+r}")
            A("v_fmac_f32 v113, s37, v118")
    A("v_lshlrev_b32 v119, 4, v6")
    A("v_bfe_u32 v120, v0, 5, 1")
    A("v_lshlrev_b32 v120, 9, v120")
    A("v_add_u32 v119, v119, v120")
    A("v_bfe_u32 v120, v0, 4, 1")
    A("v_lshlrev_b32 v120, 3, v120")
    A("v_add_u32 v119, v119, v120")
    A("s_mul_i32 s32, s13, 36")
    A("s_mul_i32 s33, s14, 9")
    A("s_add_u32 s32, s32, s33")
    A("s_mul_i32 s33, s29, 5")
    A("s_add_u32 s32, s32, s33")
    A("s_lshl_b32 s32, s32, 10")
    A("s_lshl_b32 s33, s28, 8")
    A("s_add_u32 s32, s32, s33")
    A(f"s_add_u32 s32, s32, 0x{WS_HC:x}")
    for j in range(4):
        S.vm_issue(f"buffer_store_dwordx2 {vr(128+2*j,2)}, v119, s[8:11], s32 offen offset:{j*1024} {st_flags}", "st")
    A("s_cmp_lg_u32 s29, 0")
    A(f"s_cbranch_scc1 L_{name}_no5")
    A("s_add_u32 s33, s32, 4096")
    A(f"buffer_store_dwordx2 {vr(136,2)}, v119, s[8:11], s33 offen {st_flags}")
    A.label(f"L_{name}_no5")
    A("v_mov_b32 v114, v113")
    A("s_nop 1")
    A("v_permlane32_swap_b32 v113, v114")
    A("s_nop 1")
    A("v_add_f32 v113, v113, v114")
    A("v_mov_b32 v114, v113")
    A("s_nop 1")
    A("v_permlane16_swap_b32 v113, v114")
    A("s_nop 1")
    A("v_add_f32 v113, v113, v114")
    A("v_lshlrev_b32 v115, 5, v6")
    A("s_lshl_b32 s32, s30, 9")
    A("s_lshl_b32 s33, s14, 3")
    A("s_add_u32 s32, s32, s33")
    A("s_lshl_b32 s33, s29, 2")
    A("s_add_u32 s32, s32, s33")
    A(f"s_add_u32 s32, s32, 0x{WS_SSQ:x}")
    A("s_lshl_b32 s34, s30, 6")
    A(f"s_add_u32 s34, s34, 0x{WS_MU:x}")
    A("s_mov_b64 exec, 0xffff")
    A(f"buffer_store_dword v113, v115, s[8:11], s32 offen {st_flags}")
    A("s_or_b32 s33, s14, s29")
    A("s_cmp_lg_u32 s33, 0")
    A(f"s_cbranch_scc1 L_{name}_nomu")
    A(f"buffer_store_dword v112, v8, s[8:11], s34 offen {st_flags}")
    A.label(f"L_{name}_nomu")
    A("s_mov_b64 exec, -1")
    st()
    if stamp: stamps_dump(A, nst[0], name)
    A.label(f"L_{name}_end")
    A("s_endpgm")
    return A.text() + kernel_desc(name, 512, 96, 256)

if __name__ == "__main__":
    print(gen_pb())
```

```python
import sys
sys.path.insert(0, "gen")
import p0, pa, pb, gemm1, gemm2
NAME = "sequential_preLN__linear_kernel_hedgehog__geglu_ffn__prompt"
HEAD = """; Kernarg layout for this problem (88 bytes, ptrs only, base s[0:1]):
"""
def build_multi(extra_empty=0):
    launches = [
        ("p0_kernel", p0.P0_WGS, 73728), ("pa_kernel", 256, 149504), ("pb_kernel", 256, 126976),
        ("g1_kernel", 256, 147456), ("g2_kernel", 256, 147456), ("rd_kernel", 256, 0)]
    s = HEAD
    for n, g, l in launches:
        s += f"; @launch kernel={n} grid=({g},1,1) block=(256,1,1) lds={l}\n"
    for i in range(extra_empty):
        s += f"; @launch kernel=nop_kernel grid=(256,1,1) block=(256,1,1) lds=0\n"
    s += '.amdgcn_target "amdgcn-amd-amdhsa--gfx950"\n.text\n'
    s += p0.gen_p0() + pa.gen_pa() + pb.gen_pb() + gemm1.gen_gemm1() + gemm2.gen_gemm2(init_chunks=2) + gemm2.gen_reduce()
    if extra_empty:
        from asm import kernel_header, kernel_desc
        s += kernel_header("nop_kernel") + "    s_endpgm\n" + kernel_desc("nop_kernel", 8, 16, 8)
    return s
if __name__ == "__main__":
    out = sys.argv[1] if len(sys.argv) > 1 else f"cdna_kernels/{NAME}.s"
    extra = int(sys.argv[2]) if len(sys.argv) > 2 else 0
    open(out, "w").write(build_multi(extra))
    print("wrote", out)
```
